```python
import torch

def _softmax(x, axis=-1):
    return torch.softmax(x, dim=axis)
def _gelu(x):
    return torch.nn.functional.gelu(x, approximate="tanh")
def _silu(x):
    return torch.nn.functional.silu(x)
def _sigmoid(x):
    return torch.sigmoid(x)
def _layernorm(x, axis=-1, eps=1e-5):
    m = x.mean(dim=axis, keepdim=True)
    v = x.var(dim=axis, keepdim=True, unbiased=False)
    return (x - m) / torch.sqrt(v + eps)
def _scatter_add(tgt, idx, src, axis=0):
    return tgt.clone().index_add_(axis, idx, src)
def _segment_sum(src, seg, n):
    out = torch.zeros((n,) + src.shape[1:], dtype=src.dtype)
    return out.index_add_(0, seg, src)
def _pad(x, pw):
    flat = tuple(v for pair in reversed(pw) for v in pair)
    return torch.nn.functional.pad(x, flat)

kernel_name = 'recurrent_scan__gqa_block_cached__glu_gated_reglu__decode'

def setup_inputs():

    _w = (lambda a: (lambda t: t.to(torch.bfloat16) if t.is_floating_point() else t)(torch.as_tensor(a)))
    def _A_setup():
        B, Sq, D = 8, 1, 512
        Hq, Hkv, Sk, Dh = 32, 8, 8192, 128
        assert Hq % Hkv == 0, (Hq, Hkv)
        return {
            "x": _w((lambda *s: torch.randn(*s, dtype=torch.bfloat16) * 0.2)(B, Sq, D)),
            "k_cache": _w((lambda *s: torch.randn(*s, dtype=torch.bfloat16) * 1.6)(B, Hkv, Sk, Dh)),
            "v_cache": _w((lambda *s: torch.randn(*s, dtype=torch.bfloat16) * 1.6)(B, Hkv, Sk, Dh)),
            "wq": _w((lambda *s: torch.randn(*s, dtype=torch.bfloat16) * 1.6)(D, Hq * Dh) * (D ** -0.5)),
            "wo": _w((lambda *s: torch.randn(*s, dtype=torch.bfloat16) * 1.6)(Hq * Dh, D) * ((Hq * Dh) ** -0.5)),
        }
    _A_in = _A_setup()

    def _B_setup():
        B, S, D, F = 8, 1, 512, 1792
        return {
            "x": _w((lambda *s: torch.randn(*s, dtype=torch.bfloat16) * 0.2)(B, S, D)),
            "W_gate": _w((lambda *s: torch.randn(*s, dtype=torch.bfloat16) * 0.8)(D, F) * (2.0 / D) ** 0.5),
            "W_up": _w((lambda *s: torch.randn(*s, dtype=torch.bfloat16) * 0.8)(D, F) * (2.0 / D) ** 0.5),
            "W_down": _w((lambda *s: torch.randn(*s, dtype=torch.bfloat16) * 0.8)(F, D) * (1.0 / F) ** 0.5),
        }
    _B_in = _B_setup()

    return {
        "A_x": _A_in["x"],
        "A_k_cache": _A_in["k_cache"],
        "A_v_cache": _A_in["v_cache"],
        "A_wq": _A_in["wq"],
        "A_wo": _A_in["wo"],
        "B_x": _B_in["x"],
        "B_W_gate": _B_in["W_gate"],
        "B_W_up": _B_in["W_up"],
        "B_W_down": _B_in["W_down"],
    }

def reference(A_x, A_k_cache, A_v_cache, A_wq, A_wo, B_x, B_W_gate, B_W_up, B_W_down):
    def _A_ref(x, k_cache, v_cache, wq, wo):
        B, Sq, D = x.shape
        Hq, Dh = 32, 128
        Hkv = k_cache.shape[1]
        rep = Hq // Hkv
        q = (lambda x, *d: x.permute(*d))((x @ wq).reshape(B, Sq, Hq, Dh), 0, 2, 1, 3)
        k = (lambda x, n, axis: torch.repeat_interleave(x, n, dim=axis))(k_cache, rep, axis=1)
        v = (lambda x, n, axis: torch.repeat_interleave(x, n, dim=axis))(v_cache, rep, axis=1)
        scores = torch.einsum("bhqd,bhkd->bhqk", q, k) * (Dh ** -0.5)
        p = _softmax(scores, axis=-1)
        o = torch.einsum("bhqk,bhkd->bhqd", p, v)
        return (lambda x, *d: x.permute(*d))(o, 0, 2, 1, 3).reshape(B, Sq, Hq * Dh) @ wo

    def _B_ref(x, W_gate, W_up, W_down):
        gate = torch.einsum("bsd,df->bsf", x, W_gate)
        up = torch.einsum("bsd,df->bsf", x, W_up)
        gate = gate * (lambda x, dt: x.to(dt))(gate > 0, gate.dtype)
        h = gate * up
        return torch.einsum("bsf,fd->bsd", h, W_down)

    x = A_x
    xn = _layernorm(x, axis=-1)
    s = _A_ref(xn, A_k_cache, A_v_cache, A_wq, A_wo)
    g = _silu(_B_ref(xn, B_W_gate, B_W_up, B_W_down))
    return x + s * g
```

```python
import sys

NAME = "recurrent_scan__gqa_block_cached__glu_gated_reglu__decode"

HEADER = open("cdna_kernels/%s.s.ref" % NAME).read().split("; Override launch geometry")[0]

WS_QP = 0
WS_AP = 1 << 20
WS_ML = (1 << 20) + (1 << 19)
WS_SP = 2 << 20
WS_BYTES = 4 << 20

LOG2E = 0x3FB8AA3B
SCALE = 0x3DB504F3


class A:
    def __init__(self):
        self.l = []

    def __call__(self, s):
        self.l.append("    " + s)

    def label(self, s):
        self.l.append(s + ":")

    def nop(self, n):
        while n > 0:
            k = min(n, 16)
            self("s_nop %d" % (k - 1))
            n -= k

    def text(self):
        return "\n".join(self.l) + "\n"


def vr(base, n=4):
    return "v[%d:%d]" % (base, base + n - 1)


def srd(a, s, lo, hi, nbytes):
    a("s_mov_b32 s%d, s%d" % (s, lo))
    a("s_mov_b32 s%d, s%d" % (s + 1, hi))
    a("s_mov_b32 s%d, 0x%x" % (s + 2, nbytes))
    a("s_mov_b32 s%d, 0x00020000" % (s + 3))


def allreduce(a, op, v, t1, t2):
    ins = {"add": "v_add_f32", "max": "v_max_f32"}[op]
    for ctrl in ("quad_perm:[1,0,3,2]", "quad_perm:[2,3,0,1]", "row_half_mirror", "row_mirror"):
        a.nop(2)
        a("%s_dpp v%d, v%d, v%d %s row_mask:0xf bank_mask:0xf" % (ins, v, v, v, ctrl))
    xreduce(a, op, v, t1, t2)


def xreduce(a, op, v, t1, t2):
    ins = {"add": "v_add_f32", "max": "v_max_f32"}[op]
    for sw in ("v_permlane16_swap_b32", "v_permlane32_swap_b32"):
        a("v_mov_b32 v%d, v%d" % (t1, v))
        a("v_mov_b32 v%d, v%d" % (t2, v))
        a.nop(2)
        a("%s v%d, v%d" % (sw, t1, t2))
        a.nop(1)
        a("%s v%d, v%d, v%d" % (ins, v, t1, t2))


def bf16r(a, d, s):
    a("v_cvt_pk_bf16_f32 v%d, v%d, v%d" % (d, s, s))
    a("v_lshlrev_b32 v%d, 16, v%d" % (d, d))


def transpose8x8(a, src, dst, s_even, s_odd):
    for j in range(8):
        c = j >> 1
        sel = s_odd if (j & 1) else s_even
        for p in range(4):
            a("v_perm_b32 v%d, v%d, v%d, s%d" % (dst + j * 4 + p, src + (2 * p + 1) * 4 + c, src + (2 * p) * 4 + c, sel))


def kd(name, vgpr, sgpr=102):
    acc = (vgpr + 3) // 4 * 4
    return """.section .rodata,"a"
.p2align 6
.amdhsa_kernel %s
  .amdhsa_next_free_vgpr %d
  .amdhsa_next_free_sgpr %d
  .amdhsa_accum_offset %d
  .amdhsa_group_segment_fixed_size 0
  .amdhsa_float_denorm_mode_32 3
  .amdhsa_kernarg_size 96
  .amdhsa_user_sgpr_count 2
  .amdhsa_user_sgpr_kernarg_segment_ptr 1
  .amdhsa_system_sgpr_workgroup_id_x 1
.end_amdhsa_kernel
""" % (name, vgpr, sgpr, acc)


def kstart(a, name):
    a.l.append(".text")
    a.l.append(".globl %s" % name)
    a.l.append(".p2align 8")
    a.l.append(".type %s,@function" % name)
    a.label(name)


def gen_k1(a):
    n = "k1_kernel"
    kstart(a, n)
    a("s_cmp_ge_u32 s2, 240")
    a("s_cbranch_scc1 k1_end")
    a("s_load_dwordx2 s[4:5], s[0:1], 0")
    a("s_load_dwordx2 s[6:7], s[0:1], 24")
    a("s_load_dwordx4 s[8:11], s[0:1], 48")
    a("s_load_dwordx2 s[12:13], s[0:1], 88")
    a("s_lshr_b32 s14, s2, 2")
    a("s_and_b32 s15, s2, 3")
    a("v_lshrrev_b32 v1, 6, v0")
    a("v_and_b32 v2, 63, v0")
    a.nop(1)
    a("v_readfirstlane_b32 s16, v1")
    a("s_mov_b32 s40, 0x05040100")
    a("s_mov_b32 s41, 0x07060302")
    a("s_waitcnt lgkmcnt(0)")
    srd(a, 20, 6, 7, 512 * 4096 * 2)
    a("s_mov_b32 s17, 8192")
    a("s_lshl_b32 s18, s14, 8")
    a("s_cmp_lt_u32 s14, 32")
    a("s_cbranch_scc1 k1_sel_done")
    a("s_mov_b32 s22, %d" % (512 * 1792 * 2))
    a("s_mov_b32 s17, 3584")
    a("s_cmp_lt_u32 s14, 46")
    a("s_cbranch_scc0 k1_sel_up")
    a("s_mov_b32 s20, s8")
    a("s_mov_b32 s21, s9")
    a("s_sub_u32 s18, s14, 32")
    a("s_lshl_b32 s18, s18, 8")
    a("s_branch k1_sel_done")
    a.label("k1_sel_up")
    a("s_mov_b32 s20, s10")
    a("s_mov_b32 s21, s11")
    a("s_sub_u32 s18, s14, 46")
    a("s_lshl_b32 s18, s18, 8")
    a.label("k1_sel_done")
    srd(a, 32, 4, 5, 8192)
    srd(a, 44, 12, 13, WS_BYTES)
    a("s_lshl_b32 s19, s15, 7")
    a("s_lshl_b32 s24, s16, 5")
    a("s_add_u32 s19, s19, s24")
    a("v_lshrrev_b32 v3, 4, v2")
    a("v_and_b32 v4, 15, v2")
    a("v_lshlrev_b32 v5, 3, v3")
    a("v_add_u32 v5, s19, v5")
    a("v_mov_b32 v7, v5")
    a("v_mul_lo_u32 v5, v5, s17")
    a("v_lshlrev_b32 v6, 4, v4")
    a("v_add_u32 v5, v5, v6")
    a("v_add_u32 v5, s18, v5")
    a("s_mov_b32 s24, 0")
    for i in range(1, 8):
        a("s_add_u32 s%d, s%d, s17" % (24 + i, 24 + i - 1))
    a("s_lshl_b32 s36, s16, 11")
    a("v_lshlrev_b32 v8, 4, v2")
    a("v_add_u32 v8, s36, v8")
    a("buffer_load_dwordx4 v[120:123], v8, s[32:35], 0 offen")
    a("buffer_load_dwordx4 v[124:127], v8, s[32:35], 0 offen offset:1024")
    for i in range(8):
        a("buffer_load_dwordx4 %s, v5, s[20:23], s%d offen" % (vr(16 + 4 * i), 24 + i))
    a("s_waitcnt vmcnt(8)")
    for rr in range(2):
        src = 120 + 4 * rr
        f = 128
        for c in range(4):
            a("v_lshlrev_b32 v%d, 16, v%d" % (f + 2 * c, src + c))
            a("v_and_b32 v%d, 0xffff0000, v%d" % (f + 2 * c + 1, src + c))
        a("v_add_f32 v136, v128, v129")
        for i in range(2, 8):
            a("v_add_f32 v136, v136, v%d" % (f + i))
        allreduce(a, "add", 136, 137, 138)
        a("v_mul_f32 v136, 0x3b000000, v136")
        a("v_sub_f32 v139, v128, v136")
        a("v_mul_f32 v140, v139, v139")
        for i in range(1, 8):
            a("v_sub_f32 v139, v%d, v136" % (f + i))
            a("v_fmac_f32 v140, v139, v139")
        allreduce(a, "add", 140, 137, 138)
        a("v_mul_f32 v140, 0x3b000000, v140")
        bf16r(a, 136, 136)
        bf16r(a, 140, 140)
        a("v_add_f32 v140, 0x3727c5ac, v140")
        bf16r(a, 140, 140)
        a("v_sqrt_f32 v140, v140")
        a.nop(1)
        bf16r(a, 140, 140)
        a("v_rcp_f32 v141, v140")
        a.nop(1)
        for i in range(8):
            a("v_sub_f32 v%d, v%d, v136" % (f + i, f + i))
            bf16r(a, f + i, f + i)
            a("v_mul_f32 v142, v%d, v141" % (f + i))
            a("v_fma_f32 v143, -v142, v140, v%d" % (f + i))
            a("v_fma_f32 v%d, v143, v141, v142" % (f + i))
        for c in range(4):
            a("v_cvt_pk_bf16_f32 v%d, v%d, v%d" % (144 + c, f + 2 * c, f + 2 * c + 1))
        a("ds_write_b128 v8, v[144:147] offset:%d" % (rr * 1024))
        a.nop(2)
    a("s_waitcnt lgkmcnt(0)")
    a("s_barrier")
    for c in range(4):
        a("v_mov_b32 v%d, 0" % (48 + c))
    a("v_lshlrev_b32 v9, 10, v4")
    a("v_lshlrev_b32 v10, 1, v7")
    a("v_add_u32 v9, v9, v10")
    a("v_cmp_gt_u32 vcc, 8, v4")
    a("s_and_saveexec_b64 s[38:39], vcc")
    a("ds_read_b128 v[48:51], v9")
    a("s_mov_b64 exec, s[38:39]")
    a("s_waitcnt vmcnt(0) lgkmcnt(0)")
    transpose8x8(a, 16, 52, 40, 41)
    a.nop(2)
    for j in range(8):
        a("v_mfma_f32_16x16x32_bf16 %s, %s, v[48:51], 0" % (vr(84 + 4 * j), vr(52 + 4 * j)))
    a.nop(10)
    a("s_lshl_b32 s36, s16, 13")
    a("v_lshlrev_b32 v11, 4, v2")
    a("v_add_u32 v11, s36, v11")
    for j in range(8):
        a("ds_write_b128 v11, %s offset:%d" % (vr(84 + 4 * j), 8192 + j * 1024))
    a("s_waitcnt lgkmcnt(0)")
    a("s_barrier")
    a("v_lshrrev_b32 v12, 5, v0")
    a("v_and_b32 v13, 7, v0")
    a("v_bfe_u32 v14, v0, 3, 2")
    a("v_lshlrev_b32 v15, 10, v12")
    a("v_lshlrev_b32 v9, 4, v13")
    a("v_add_u32 v15, v15, v9")
    a("v_lshlrev_b32 v9, 8, v14")
    a("v_add_u32 v15, v15, v9")
    for w in range(4):
        a("ds_read_b128 %s, v15 offset:%d" % (vr(16 + 4 * w), 8192 + w * 8192))
    a("s_waitcnt lgkmcnt(0)")
    for r in range(4):
        a("v_add_f32 v%d, v%d, v%d" % (16 + r, 16 + r, 20 + r))
        a("v_add_f32 v%d, v%d, v%d" % (24 + r, 24 + r, 28 + r))
        a("v_add_f32 v%d, v%d, v%d" % (16 + r, 16 + r, 24 + r))
    a("s_lshl_b32 s36, s15, 3")
    a("v_add_u32 v9, s36, v13")
    a("s_movk_i32 s37, 7680")
    a("v_mul_lo_u32 v9, v9, s37")
    a("s_lshl_b32 s36, s14, 7")
    a("v_add_u32 v9, s36, v9")
    a("v_lshlrev_b32 v10, 5, v14")
    a("v_add_u32 v9, v9, v10")
    a("v_add_u32 v9, v9, v12")
    a("v_lshlrev_b32 v9, 2, v9")
    for r in range(4):
        a("buffer_store_dword v%d, v9, s[44:47], 0 offen offset:%d" % (16 + r, WS_QP + r * 32))
    a.label("k1_end")
    a("s_endpgm")
    return kd(n, 148)


def gen_k2(a, NT=8):
    n = "k2_kernel"
    kstart(a, n)
    KB = [16, 48]
    VB = [80, 112]
    VT = 144
    OA = 176
    QF = 208
    SA = 224
    Z = 232
    PK = 244
    M, L, AL, NM, T1, T2 = 248, 249, 250, 251, 252, 253
    a("s_cmp_ge_u32 s2, 256")
    a("s_cbranch_scc1 k2_end")
    a("s_load_dwordx4 s[4:7], s[0:1], 8")
    a("s_load_dwordx2 s[12:13], s[0:1], 88")
    a("v_lshrrev_b32 v1, 6, v0")
    a("v_and_b32 v2, 63, v0")
    a.nop(1)
    a("v_readfirstlane_b32 s16, v1")
    a("s_mov_b32 s40, 0x05040100")
    a("s_mov_b32 s41, 0x07060302")
    a("s_mov_b32 s42, 0x%x" % LOG2E)
    a("s_mov_b32 s43, 0x%x" % SCALE)
    a("v_lshrrev_b32 v3, 4, v2")
    a("v_and_b32 v4, 15, v2")
    a("v_and_b32 v5, 3, v4")
    a("v_lshlrev_b32 v5, 2, v5")
    a("v_lshrrev_b32 v6, 2, v4")
    a("v_add_u32 v5, v5, v6")
    a("v_lshlrev_b32 v5, 8, v5")
    a("v_lshlrev_b32 v6, 4, v3")
    a("v_add_u32 v5, v5, v6")
    a("v_lshlrev_b32 v6, 8, v3")
    a("v_lshlrev_b32 v7, 4, v4")
    a("v_add_u32 v6, v6, v7")
    a("s_lshl_b32 s17, s2, 19")
    a("s_lshl_b32 s18, s16, 13")
    a("s_add_u32 s17, s17, s18")
    a("s_waitcnt lgkmcnt(0)")
    srd(a, 20, 4, 5, 128 << 20)
    srd(a, 24, 6, 7, 128 << 20)
    srd(a, 44, 12, 13, WS_BYTES)

    def soffs(i):
        a("s_add_u32 s30, s17, 0x%x" % (i * 65536))
        a("s_add_u32 s31, s30, 4096")

    def loadK(i):
        soffs(i)
        b = KB[i % 2]
        for t in range(2):
            for j in range(4):
                a("buffer_load_dwordx4 %s, v5, s[20:23], s%d offen offset:%d" % (vr(b + t * 16 + j * 4), 30 + t, j * 64))

    def loadV(i):
        soffs(i)
        b = VB[i % 2]
        for k in range(8):
            a("buffer_load_dwordx4 %s, v6, s[24:27], s%d offen offset:%d" % (vr(b + k * 4), 30 + (k >> 2), (k & 3) * 1024))

    loadK(0)
    loadV(0)
    loadK(1)
    loadV(1)
    a("s_lshr_b32 s32, s2, 5")
    a("s_lshr_b32 s33, s2, 2")
    a("s_and_b32 s33, s33, 7")
    a("s_mul_i32 s34, s32, 7680")
    a("s_lshl_b32 s35, s33, 9")
    a("s_add_u32 s34, s34, s35")
    a("v_add_u32 v7, s34, v0")
    a("v_lshlrev_b32 v7, 2, v7")
    for ks in range(4):
        a("s_mov_b32 s36, %d" % (WS_QP + ks * 8 * 7680 * 4))
        a("buffer_load_dword v%d, v7, s[44:47], s36 offen" % (Z + ks))
    a("s_waitcnt vmcnt(0)")
    a("v_add_f32 v%d, v%d, v%d" % (Z, Z, Z + 1))
    a("v_add_f32 v%d, v%d, v%d" % (Z + 2, Z + 2, Z + 3))
    a("v_add_f32 v%d, v%d, v%d" % (Z, Z, Z + 2))
    a("v_cvt_pk_bf16_f32 v%d, v%d, v%d" % (Z, Z, Z))
    a("v_lshlrev_b32 v8, 1, v0")
    a("ds_write_b16 v8, v%d offset:%d" % (Z, 17408))
    a("s_waitcnt lgkmcnt(0)")
    a("s_barrier")
    for c in range(16):
        a("v_mov_b32 v%d, 0" % (QF + c))
    a("v_lshlrev_b32 v8, 8, v4")
    a("v_lshlrev_b32 v9, 4, v3")
    a("v_add_u32 v8, v8, v9")
    a("v_cmp_gt_u32 vcc, 4, v4")
    a("s_and_saveexec_b64 s[38:39], vcc")
    for j in range(4):
        a("ds_read_b128 %s, v8 offset:%d" % (vr(QF + 4 * j), 17408 + j * 64))
    a("s_mov_b64 exec, s[38:39]")
    a("s_waitcnt lgkmcnt(0)")
    a.nop(2)

    for i in range(NT):
        kb = KB[i % 2]
        vb = VB[i % 2]
        rem = 8 + (16 if i + 1 < NT else 0)
        if i >= 2:
            a("s_waitcnt vmcnt(%d)" % rem)
        for t in range(2):
            for j in range(4):
                c = "0" if j == 0 else vr(SA + 4 * t)
                a("v_mfma_f32_16x16x32_bf16 %s, %s, %s, %s" % (vr(SA + 4 * t), vr(kb + t * 16 + j * 4), vr(QF + 4 * j), c))
        if i + 2 < NT:
            loadK(i + 2)
        a.nop(10)
        for c in range(4):
            a("v_cvt_pk_bf16_f32 v%d, v%d, v%d" % (Z + 8 + c, SA + 2 * c, SA + 2 * c + 1))
        for c in range(4):
            a("v_lshlrev_b32 v%d, 16, v%d" % (Z + 2 * c, Z + 8 + c))
            a("v_and_b32 v%d, 0xffff0000, v%d" % (Z + 2 * c + 1, Z + 8 + c))
        for c in range(8):
            a("v_mul_f32 v%d, s43, v%d" % (Z + c, Z + c))
        for c in range(4):
            a("v_cvt_pk_bf16_f32 v%d, v%d, v%d" % (Z + 8 + c, Z + 2 * c, Z + 2 * c + 1))
        for c in range(4):
            a("v_lshlrev_b32 v%d, 16, v%d" % (Z + 2 * c, Z + 8 + c))
            a("v_and_b32 v%d, 0xffff0000, v%d" % (Z + 2 * c + 1, Z + 8 + c))
        a("v_max3_f32 v%d, v%d, v%d, v%d" % (AL, Z, Z + 1, Z + 2))
        a("v_max3_f32 v%d, v%d, v%d, v%d" % (AL, AL, Z + 3, Z + 4))
        a("v_max3_f32 v%d, v%d, v%d, v%d" % (AL, AL, Z + 5, Z + 6))
        a("v_max_f32 v%d, v%d, v%d" % (AL, AL, Z + 7))
        xreduce(a, "max", AL, T1, T2)
        if i == 0:
            a("v_mov_b32 v%d, v%d" % (M, AL))
        else:
            a("v_max_f32 v%d, v%d, v%d" % (T1, M, AL))
            a("v_sub_f32 v%d, v%d, v%d" % (T2, M, T1))
            a("v_mul_f32 v%d, s42, v%d" % (T2, T2))
            a("v_exp_f32 v%d, v%d" % (AL, T2))
            a("v_mov_b32 v%d, v%d" % (M, T1))
        a("v_mul_f32 v%d, s42, v%d" % (NM, M))
        for c in range(8):
            a("v_fma_f32 v%d, v%d, s42, -v%d" % (Z + c, Z + c, NM))
        for c in range(8):
            a("v_exp_f32 v%d, v%d" % (Z + c, Z + c))
        a.nop(1)
        for c in range(4):
            a("v_cvt_pk_bf16_f32 v%d, v%d, v%d" % (PK + c, Z + 2 * c, Z + 2 * c + 1))
        if i == 0:
            a("v_add_f32 v%d, v%d, v%d" % (L, Z, Z + 1))
        else:
            a("v_fma_f32 v%d, v%d, v%d, v%d" % (L, L, AL, Z))
            a("v_add_f32 v%d, v%d, v%d" % (L, L, Z + 1))
        for c in range(2, 8):
            a("v_add_f32 v%d, v%d, v%d" % (L, L, Z + c))
        if i > 0:
            for c in range(32):
                a("v_mul_f32 v%d, v%d, v%d" % (OA + c, OA + c, AL))
        rem = (16 if i + 1 < NT else 0) + (8 if i + 2 < NT else 0)
        if i >= 2:
            a("s_waitcnt vmcnt(%d)" % rem)
        transpose8x8(a, vb, VT, 40, 41)
        if i + 2 < NT:
            loadV(i + 2)
        a.nop(2)
        for j in range(8):
            c = "0" if i == 0 else vr(OA + 4 * j)
            a("v_mfma_f32_16x16x32_bf16 %s, %s, %s, %s" % (vr(OA + 4 * j), vr(VT + 4 * j), vr(PK), c))
        a.nop(4)
    a.nop(10)
    xreduce(a, "add", L, T1, T2)
    a("v_lshlrev_b32 v8, 2, v4")
    a("v_add_u32 v8, v8, v3")
    a("v_lshlrev_b32 v8, 4, v8")
    a("s_lshl_b32 s36, s16, 11")
    a("v_add_u32 v8, s36, v8")
    a("v_lshlrev_b32 v9, 3, v4")
    a("s_lshl_b32 s36, s16, 5")
    a("v_add_u32 v9, s36, v9")
    a("v_mov_b32 v%d, v%d" % (T1, M))
    a("v_mov_b32 v%d, v%d" % (T2, L))
    a("v_cmp_gt_u32 vcc, 4, v4")
    a("s_and_saveexec_b64 s[38:39], vcc")
    for j in range(8):
        a("ds_write_b128 v8, %s offset:%d" % (vr(OA + 4 * j), j * 256))
    a("ds_write_b64 v9, v[%d:%d] offset:16384" % (T1, T2))
    a("s_mov_b64 exec, s[38:39]")
    a("s_waitcnt lgkmcnt(0)")
    a("s_barrier")
    a("v_bfe_u32 v10, v0, 4, 2")
    a("v_lshlrev_b32 v11, 3, v10")
    for w in range(8):
        a("ds_read_b64 v[%d:%d], v11 offset:%d" % (16 + 2 * w, 17 + 2 * w, 16384 + w * 32))
    a("v_lshlrev_b32 v12, 2, v0")
    for w in range(8):
        a("ds_read_b32 v%d, v12 offset:%d" % (32 + w, w * 2048))
    a("s_waitcnt lgkmcnt(0)")
    a("v_max3_f32 v40, v16, v18, v20")
    a("v_max3_f32 v40, v40, v22, v24")
    a("v_max3_f32 v40, v40, v26, v28")
    a("v_max_f32 v40, v40, v30")
    for w in range(8):
        a("v_sub_f32 v41, v%d, v40" % (16 + 2 * w))
        a("v_mul_f32 v41, s42, v41")
        a("v_exp_f32 v41, v41")
        a.nop(1)
        if w == 0:
            a("v_mul_f32 v42, v41, v17")
            a("v_mul_f32 v43, v41, v32")
        else:
            a("v_fmac_f32 v42, v41, v%d" % (17 + 2 * w))
            a("v_fmac_f32 v43, v41, v%d" % (32 + w))
    a("s_and_b32 s36, s2, 0xfc")
    a("s_and_b32 s37, s2, 3")
    a("v_add_u32 v13, s36, v10")
    a("v_lshlrev_b32 v13, 2, v13")
    a("v_add_u32 v13, s37, v13")
    a("v_bfe_u32 v14, v0, 2, 2")
    a("v_lshlrev_b32 v14, 5, v14")
    a("v_and_b32 v15, 3, v0")
    a("v_lshlrev_b32 v15, 3, v15")
    a("v_add_u32 v14, v14, v15")
    a("v_lshrrev_b32 v15, 6, v0")
    a("v_add_u32 v14, v14, v15")
    a("v_lshlrev_b32 v15, 7, v13")
    a("v_add_u32 v15, v15, v14")
    a("v_lshlrev_b32 v15, 2, v15")
    a("s_mov_b32 s36, %d" % WS_AP)
    a("buffer_store_dword v43, v15, s[44:47], s36 offen")
    a("v_lshlrev_b32 v15, 3, v13")
    a("v_mov_b32 v41, v42")
    a("v_cmp_eq_u32 vcc, 0, v14")
    a("s_and_saveexec_b64 s[38:39], vcc")
    a("s_mov_b32 s36, %d" % WS_ML)
    a("buffer_store_dwordx2 v[40:41], v15, s[44:47], s36 offen")
    a("s_mov_b64 exec, s[38:39]")
    a.label("k2_end")
    a("s_endpgm")
    return kd(n, 256)


def gen_k3a(a):
    n = "k3a_kernel"
    kstart(a, n)
    a("s_cmp_ge_u32 s2, 184")
    a("s_cbranch_scc1 k3a_end")
    a("s_load_dwordx2 s[4:5], s[0:1], 32")
    a("s_load_dwordx2 s[6:7], s[0:1], 64")
    a("s_load_dwordx2 s[12:13], s[0:1], 88")
    a("s_lshr_b32 s14, s2, 2")
    a("s_and_b32 s15, s2, 3")
    a("v_lshrrev_b32 v1, 6, v0")
    a("v_and_b32 v2, 63, v0")
    a.nop(1)
    a("v_readfirstlane_b32 s16, v1")
    a("s_mov_b32 s40, 0x05040100")
    a("s_mov_b32 s41, 0x07060302")
    a("s_mov_b32 s42, 0x%x" % LOG2E)
    a("v_lshrrev_b32 v3, 4, v2")
    a("v_and_b32 v4, 15, v2")
    a("v_lshrrev_b32 v10, 5, v0")
    a("v_and_b32 v11, 31, v0")
    a("s_waitcnt lgkmcnt(0)")
    srd(a, 44, 12, 13, WS_BYTES)
    srd(a, 20, 4, 5, 4096 * 512 * 2)
    a("s_mov_b32 s17, s14")
    a("s_cmp_lt_u32 s14, 32")
    a("s_cbranch_scc1 k3a_sel_done")
    a("s_mov_b32 s20, s6")
    a("s_mov_b32 s21, s7")
    a("s_mov_b32 s22, %d" % (1792 * 512 * 2))
    a("s_sub_u32 s17, s14, 32")
    a.label("k3a_sel_done")
    a("s_lshl_b32 s18, s17, 17")
    a("s_lshl_b32 s19, s16, 15")
    a("s_add_u32 s18, s18, s19")
    a("s_lshl_b32 s19, s15, 8")
    a("s_add_u32 s18, s18, s19")
    a("s_add_u32 s19, s18, 4096")
    a("v_lshlrev_b32 v5, 13, v3")
    a("v_lshlrev_b32 v6, 4, v4")
    a("v_add_u32 v5, v5, v6")
    for i in range(8):
        a("buffer_load_dwordx4 %s, v5, s[20:23], s%d offen offset:%d" % (vr(16 + 4 * i), 18 + (i >> 2), (i & 3) * 1024))
    a("s_cmp_lt_u32 s14, 32")
    a("s_cbranch_scc0 k3a_ffn")
    a("v_lshlrev_b32 v7, 5, v10")
    a("v_add_u32 v7, s14, v7")
    a("v_lshlrev_b32 v8, 5, v7")
    a("s_mov_b32 s36, %d" % WS_ML)
    a("buffer_load_dwordx4 v[120:123], v8, s[44:47], s36 offen")
    a("buffer_load_dwordx4 v[124:127], v8, s[44:47], s36 offen offset:16")
    a("v_lshlrev_b32 v8, 11, v7")
    a("v_lshlrev_b32 v9, 4, v11")
    a("v_add_u32 v8, v8, v9")
    a("s_mov_b32 s36, %d" % WS_AP)
    for sp in range(4):
        a("buffer_load_dwordx4 %s, v8, s[44:47], s36 offen offset:%d" % (vr(128 + 4 * sp), sp * 512))
    a("s_waitcnt vmcnt(0)")
    a("v_max3_f32 v144, v120, v122, v124")
    a("v_max_f32 v144, v144, v126")
    for sp in range(4):
        a("v_sub_f32 v145, v%d, v144" % (120 + 2 * sp))
        a("v_mul_f32 v145, s42, v145")
        a("v_exp_f32 v145, v145")
        a.nop(1)
        if sp == 0:
            a("v_mul_f32 v146, v145, v121")
            for r in range(4):
                a("v_mul_f32 v%d, v145, v%d" % (148 + r, 128 + r))
        else:
            a("v_fmac_f32 v146, v145, v%d" % (121 + 2 * sp))
            for r in range(4):
                a("v_fmac_f32 v%d, v145, v%d" % (148 + r, 128 + 4 * sp + r))
    a("v_rcp_f32 v146, v146")
    a.nop(1)
    for r in range(4):
        a("v_mul_f32 v%d, v%d, v146" % (148 + r, 148 + r))
    a("v_cvt_pk_bf16_f32 v152, v148, v149")
    a("v_cvt_pk_bf16_f32 v153, v150, v151")
    a("s_branch k3a_join")
    a.label("k3a_ffn")
    a("s_movk_i32 s37, 7680")
    a("v_mul_lo_u32 v7, v10, s37")
    a("s_lshl_b32 s36, s17, 7")
    a("s_add_u32 s36, s36, 4096")
    a("v_add_u32 v7, s36, v7")
    a("v_lshlrev_b32 v8, 2, v11")
    a("v_add_u32 v7, v7, v8")
    a("v_lshlrev_b32 v7, 2, v7")
    for ks in range(4):
        a("s_mov_b32 s36, %d" % (WS_QP + ks * 8 * 7680 * 4))
        a("buffer_load_dwordx4 %s, v7, s[44:47], s36 offen" % vr(120 + 4 * ks))
        a("s_mov_b32 s36, %d" % (WS_QP + ks * 8 * 7680 * 4 + 1792 * 4))
        a("buffer_load_dwordx4 %s, v7, s[44:47], s36 offen" % vr(136 + 4 * ks))
    a("s_waitcnt vmcnt(0)")
    for base in (120, 136):
        for r in range(4):
            a("v_add_f32 v%d, v%d, v%d" % (base + r, base + r, base + 4 + r))
            a("v_add_f32 v%d, v%d, v%d" % (base + 8 + r, base + 8 + r, base + 12 + r))
            a("v_add_f32 v%d, v%d, v%d" % (base + r, base + r, base + 8 + r))
            bf16r(a, base + r, base + r)
    for r in range(4):
        a("v_max_f32 v%d, 0, v%d" % (120 + r, 120 + r))
        a("v_mul_f32 v%d, v%d, v%d" % (120 + r, 120 + r, 136 + r))
    a("v_cvt_pk_bf16_f32 v152, v120, v121")
    a("v_cvt_pk_bf16_f32 v153, v122, v123")
    a.label("k3a_join")
    a("v_lshlrev_b32 v8, 8, v10")
    a("v_lshlrev_b32 v9, 3, v11")
    a("v_add_u32 v8, v8, v9")
    a("ds_write_b64 v8, v[152:153]")
    a("s_waitcnt lgkmcnt(0)")
    a("s_barrier")
    for c in range(4):
        a("v_mov_b32 v%d, 0" % (48 + c))
    a("v_lshlrev_b32 v9, 8, v4")
    a("v_lshlrev_b32 v12, 4, v3")
    a("v_add_u32 v9, v9, v12")
    a("s_lshl_b32 s36, s16, 6")
    a("v_add_u32 v9, s36, v9")
    a("v_cmp_gt_u32 vcc, 8, v4")
    a("s_and_saveexec_b64 s[38:39], vcc")
    a("ds_read_b128 v[48:51], v9")
    a("s_mov_b64 exec, s[38:39]")
    a("s_waitcnt vmcnt(0) lgkmcnt(0)")
    transpose8x8(a, 16, 52, 40, 41)
    a.nop(2)
    for j in range(8):
        a("v_mfma_f32_16x16x32_bf16 %s, %s, v[48:51], 0" % (vr(84 + 4 * j), vr(52 + 4 * j)))
    a.nop(10)
    a("s_lshl_b32 s36, s16, 13")
    a("v_lshlrev_b32 v11, 4, v2")
    a("v_add_u32 v11, s36, v11")
    for j in range(8):
        a("ds_write_b128 v11, %s offset:%d" % (vr(84 + 4 * j), 8192 + j * 1024))
    a("s_waitcnt lgkmcnt(0)")
    a("s_barrier")
    a("v_lshrrev_b32 v12, 5, v0")
    a("v_and_b32 v13, 7, v0")
    a("v_bfe_u32 v14, v0, 3, 2")
    a("v_lshlrev_b32 v15, 10, v12")
    a("v_lshlrev_b32 v9, 4, v13")
    a("v_add_u32 v15, v15, v9")
    a("v_lshlrev_b32 v9, 8, v14")
    a("v_add_u32 v15, v15, v9")
    for w in range(4):
        a("ds_read_b128 %s, v15 offset:%d" % (vr(16 + 4 * w), 8192 + w * 8192))
    a("s_waitcnt lgkmcnt(0)")
    for r in range(4):
        a("v_add_f32 v%d, v%d, v%d" % (16 + r, 16 + r, 20 + r))
        a("v_add_f32 v%d, v%d, v%d" % (24 + r, 24 + r, 28 + r))
        a("v_add_f32 v%d, v%d, v%d" % (16 + r, 16 + r, 24 + r))
    a("s_lshl_b32 s36, s14, 3")
    a("v_add_u32 v9, s36, v13")
    a("v_lshlrev_b32 v9, 9, v9")
    a("s_lshl_b32 s36, s15, 7")
    a("v_add_u32 v9, s36, v9")
    a("v_lshlrev_b32 v10, 5, v14")
    a("v_add_u32 v9, v9, v10")
    a("v_add_u32 v9, v9, v12")
    a("v_lshlrev_b32 v9, 2, v9")
    a("s_mov_b32 s36, %d" % WS_SP)
    for r in range(4):
        a("buffer_store_dword v%d, v9, s[44:47], s36 offen offset:%d" % (16 + r, r * 32))
    a.label("k3a_end")
    a("s_endpgm")
    return kd(n, 156)


def gen_k3b(a):
    n = "k3b_kernel"
    kstart(a, n)
    a("s_cmp_ge_u32 s2, 16")
    a("s_cbranch_scc1 k3b_end")
    a("s_load_dwordx2 s[4:5], s[0:1], 0")
    a("s_load_dwordx2 s[6:7], s[0:1], 72")
    a("s_load_dwordx2 s[12:13], s[0:1], 88")
    a("s_mov_b32 s42, 0x%x" % LOG2E)
    a("s_lshl_b32 s3, s2, 8")
    a("v_add_u32 v1, s3, v0")
    a("v_lshlrev_b32 v2, 2, v1")
    a("v_lshlrev_b32 v3, 1, v1")
    a("s_waitcnt lgkmcnt(0)")
    srd(a, 44, 12, 13, WS_BYTES)
    srd(a, 20, 4, 5, 8192)
    srd(a, 24, 6, 7, 8192)
    a("buffer_load_ushort v4, v3, s[20:23], 0 offen")
    for kc in range(46):
        a("s_mov_b32 s36, %d" % (WS_SP + kc * 16384))
        a("buffer_load_dword v%d, v2, s[44:47], s36 offen" % (16 + kc))
    a("s_waitcnt vmcnt(0)")
    for kc in range(1, 32):
        a("v_add_f32 v16, v16, v%d" % (16 + kc))
    for kc in range(33, 46):
        a("v_add_f32 v48, v48, v%d" % (16 + kc))
    bf16r(a, 16, 16)
    bf16r(a, 48, 48)
    a("v_mul_f32 v5, s42, v48")
    a("v_exp_f32 v5, -v5")
    a.nop(1)
    a("v_add_f32 v5, 1.0, v5")
    a("v_rcp_f32 v6, v5")
    a.nop(1)
    a("v_mul_f32 v7, v48, v6")
    a("v_fma_f32 v8, -v7, v5, v48")
    a("v_fma_f32 v7, v8, v6, v7")
    bf16r(a, 7, 7)
    a("v_mul_f32 v7, v16, v7")
    bf16r(a, 7, 7)
    a("v_lshlrev_b32 v4, 16, v4")
    a("v_add_f32 v7, v4, v7")
    a("v_cvt_pk_bf16_f32 v7, v7, v7")
    a("buffer_store_short v7, v3, s[24:27], 0 offen")
    a.label("k3b_end")
    a("s_endpgm")
    return kd(n, 64)


def main():
    a = A()
    kds = []
    kds.append(gen_k1(a))
    kds.append(gen_k2(a))
    kds.append(gen_k3a(a))
    kds.append(gen_k3b(a))
    out = HEADER
    out += "; @launch kernel=k1_kernel grid=(240,1,1) block=(256,1,1) lds=40960\n"
    out += "; @launch kernel=k2_kernel grid=(256,1,1) block=(512,1,1) lds=18432\n"
    out += "; @launch kernel=k3a_kernel grid=(184,1,1) block=(256,1,1) lds=40960\n"
    out += "; @launch kernel=k3b_kernel grid=(16,1,1) block=(256,1,1) lds=0\n"
    out += '.amdgcn_target "amdgcn-amd-amdhsa--gfx950"\n'
    out += a.text()
    out += "".join(kds)
    path = sys.argv[1] if len(sys.argv) > 1 else "cdna_kernels/%s.s" % NAME
    open(path, "w").write(out)


if __name__ == "__main__":
    main()
```
